```python
import torch

def _softmax(x, axis=-1):
    return torch.softmax(x, dim=axis)
def _gelu(x):
    return torch.nn.functional.gelu(x, approximate="tanh")
def _silu(x):
    return torch.nn.functional.silu(x)
def _sigmoid(x):
    return torch.sigmoid(x)
def _layernorm(x, axis=-1, eps=1e-5):
    m = x.mean(dim=axis, keepdim=True)
    v = x.var(dim=axis, keepdim=True, unbiased=False)
    return (x - m) / torch.sqrt(v + eps)
def _scatter_add(tgt, idx, src, axis=0):
    return tgt.clone().index_add_(axis, idx, src)
def _segment_sum(src, seg, n):
    out = torch.zeros((n,) + src.shape[1:], dtype=src.dtype)
    return out.index_add_(0, seg, src)
def _pad(x, pw):
    flat = tuple(v for pair in reversed(pw) for v in pair)
    return torch.nn.functional.pad(x, flat)

kernel_name = 'sequential_preLN__ssm_conv_s4__glu_gated_swiglu__prompt'

def setup_inputs():

    _w = (lambda a: (lambda t: t.to(torch.bfloat16) if t.is_floating_point() else t)(torch.as_tensor(a)))
    def _A_setup():
        B, L, D, N = 1, 2048, 640, 192
        A_re = -(lambda _x: torch.exp(torch.as_tensor(_x)))((lambda *s: torch.randn(*s, dtype=torch.bfloat16) * 3.2)(D, N))
        A_im = torch.pi * (lambda *s: torch.randn(*s, dtype=torch.bfloat16) * 0.05)(D, N)
        B_re = (lambda *s: torch.randn(*s, dtype=torch.bfloat16) * 0.05)(D, N)
        B_im = (lambda *s: torch.randn(*s, dtype=torch.bfloat16) * 0.05)(D, N)
        C_re = (lambda *s: torch.randn(*s, dtype=torch.bfloat16) * 0.05)(D, N)
        C_im = (lambda *s: torch.randn(*s, dtype=torch.bfloat16) * 0.05)(D, N)
        log_dt = (lambda *s: torch.randn(*s, dtype=torch.bfloat16) * 0.05)(D) * 0.5 - 4.0
        Dskip = (lambda *s: torch.randn(*s, dtype=torch.bfloat16) * 0.05)(D)
        return {
            "u": _w((lambda *s: torch.randn(*s, dtype=torch.bfloat16) * 0.05)(B, L, D)),
            "A_re": _w(A_re),
            "A_im": _w(A_im),
            "B_re": _w(B_re),
            "B_im": _w(B_im),
            "C_re": _w(C_re),
            "C_im": _w(C_im),
            "log_dt": _w(log_dt),
            "Dskip": _w(Dskip),
        }
    _A_in = _A_setup()

    def _B_setup():
        B, S, D, F = 1, 2048, 640, 1536
        return {
            "x": _w((lambda *s: torch.randn(*s, dtype=torch.bfloat16) * 0.05)(B, S, D)),
            "w1": _w((lambda *s: torch.randn(*s, dtype=torch.bfloat16) * 0.4)(D, F) * (2.0 / D) ** 0.5),
            "w3": _w((lambda *s: torch.randn(*s, dtype=torch.bfloat16) * 0.4)(D, F) * (2.0 / D) ** 0.5),
            "w2": _w((lambda *s: torch.randn(*s, dtype=torch.bfloat16) * 0.4)(F, D) * (2.0 / F) ** 0.5),
        }
    _B_in = _B_setup()

    return {
        "A_u": _A_in["u"],
        "A_A_re": _A_in["A_re"],
        "A_A_im": _A_in["A_im"],
        "A_B_re": _A_in["B_re"],
        "A_B_im": _A_in["B_im"],
        "A_C_re": _A_in["C_re"],
        "A_C_im": _A_in["C_im"],
        "A_log_dt": _A_in["log_dt"],
        "A_Dskip": _A_in["Dskip"],
        "B_x": _B_in["x"],
        "B_w1": _B_in["w1"],
        "B_w3": _B_in["w3"],
        "B_w2": _B_in["w2"],
    }

def reference(A_u, A_A_re, A_A_im, A_B_re, A_B_im, A_C_re, A_C_im, A_log_dt, A_Dskip, B_x, B_w1, B_w3, B_w2):
    def _A_ref(u, A_re, A_im, B_re, B_im, C_re, C_im, log_dt, Dskip):
        Bsz, L, D = u.shape
        dt = torch.exp(log_dt)[:, None]
        A = A_re + 1j * A_im
        Bc = B_re + 1j * B_im
        Cc = C_re + 1j * C_im
        logdA = dt * A
        dB = dt * Bc
        l = (lambda x, dt: x.to(dt))(torch.arange(L), A_re.dtype)
        P = torch.exp(logdA[:, :, None] * l[None, None, :])
        K = torch.einsum("dn,dnl,dn->dl", Cc, P, dB).real
        L2 = 2 * L
        Kp = _pad(K, ((0, 0), (0, L)))
        up = (lambda x, *d: x.permute(*d))(u, 0, 2, 1)
        up = _pad(up, ((0, 0), (0, 0), (0, L)))
        Kf = (lambda x, axes=(-2,-1): torch.fft.rfft2(x.float(), dim=axes))(Kp[:, None, :], axes=(-2, -1))
        Uf = (lambda x, axes=(-2,-1): torch.fft.rfft2(x.float(), dim=axes))(up[:, :, None, :], axes=(-2, -1))
        Yf = Uf * Kf[None, :, :, :]
        y = (lambda x, s, axes=(-2,-1): torch.fft.irfft2(x, s=s, dim=axes).to(torch.bfloat16))(Yf, (1, L2), axes=(-2, -1))[:, :, 0, :L]
        y = (lambda x, *d: x.permute(*d))(y, 0, 2, 1) + u * Dskip[None, None, :]
        return y

    def _B_ref(x, w1, w3, w2):
        gate = torch.einsum("bsd,df->bsf", x, w1)
        up = torch.einsum("bsd,df->bsf", x, w3)
        h = _silu(gate) * up
        out = torch.einsum("bsf,fd->bsd", h, w2)
        return out

    x = A_u
    h = x + _A_ref(_layernorm(x, axis=-1), A_A_re, A_A_im, A_B_re, A_B_im, A_C_re, A_C_im, A_log_dt, A_Dskip)
    h2 = h + _B_ref(_layernorm(h, axis=-1), B_w1, B_w3, B_w2)
    return h2
```

```python
import re

REG_RE = re.compile(r'(?<![\w.])([vas])(\d+)(?![\w\[])|(?<![\w.])([vas])\[(\d+):(\d+)\]|(?<![\w.])(vcc|exec|m0|scc)(?![\w])')
TRANS = ('v_exp_f32', 'v_log_f32', 'v_rcp_f32', 'v_rsq_f32', 'v_sqrt_f32', 'v_sin_f32', 'v_cos_f32', 'v_rcp_iflag_f32')

def regs_of(tok):
    out = set()
    for m in REG_RE.finditer(tok):
        if m.group(1): out.add((m.group(1), int(m.group(2))))
        elif m.group(3):
            for i in range(int(m.group(4)), int(m.group(5)) + 1): out.add((m.group(3), i))
        else: out.add((m.group(6), 0))
    return out

def split_ops(s):
    ops, depth, cur = [], 0, ''
    for ch in s:
        if ch == '[': depth += 1
        if ch == ']': depth -= 1
        if ch == ',' and depth == 0: ops.append(cur.strip()); cur = ''
        else: cur += ch
    if cur.strip(): ops.append(cur.strip())
    return ops

class Ins:
    def __init__(self, text):
        self.text = text
        t = text.split(';')[0].strip()
        self.label = t.endswith(':')
        self.directive = t.startswith('.') and not self.label
        parts = t.split(None, 1)
        self.op = parts[0] if parts else ''
        op = self.op
        rest = parts[1] if len(parts) > 1 else ''
        ops = split_ops(rest)
        self.ops = ops
        self.w, self.r = set(), set()
        self.kind = 'other'
        self.states = 1
        if self.label or self.directive or not op:
            self.states = 0; return
        R = [regs_of(o) for o in ops]
        allr = set().union(*R) if R else set()
        if op == 's_nop':
            self.states = int(ops[0], 0) + 1; self.kind = 'salu'; return
        if op.startswith('v_mfma'):
            self.kind = 'mfma'; self.w = R[0]; self.a = R[1]; self.b = R[2]; self.c = R[3]; self.r = R[1] | R[2] | R[3]
            self.passes = 8 if '32x32' in op else 4
        elif op.startswith('v_'):
            self.kind = 'valu'
            if op.startswith('v_cmp'):
                self.w = R[0]; self.r = set().union(*R[1:])
                if op.startswith('v_cmpx'): self.w = self.w | {('exec', 0)}
            elif 'swap' in op:
                self.w = R[0] | R[1]; self.r = R[0] | R[1]
            elif op.startswith(('v_add_co', 'v_sub_co', 'v_addc_co', 'v_subb_co', 'v_mad_u64_u32')):
                self.w = R[0] | R[1]; self.r = set().union(*R[2:])
            else:
                self.w = R[0]; self.r = set().union(*R[1:]) if len(R) > 1 else set()
                if op.startswith(('v_fmac', 'v_dot2c', 'v_pk_fmac', 'v_writelane')) or 'dpp' in text or 'row_' in text or 'sdwa' in op:
                    self.r |= R[0]
                if op.startswith('v_cndmask') and len(ops) == 3: self.r.add(('vcc', 0))
            self.trans = op.replace('_e32', '').replace('_e64', '') in TRANS
            self.dpp = ('row_' in text or 'quad_perm' in text or 'wave_' in text or '_dpp' in op)
        elif op.startswith('ds_'):
            self.kind = 'ds'
            if op.startswith(('ds_read', 'ds_bpermute', 'ds_permute', 'ds_swizzle')) or '_rtn' in op:
                self.w = R[0]; self.r = set().union(*R[1:]) if len(R) > 1 else set()
            else: self.r = allr
            if 'addtid' in op: self.r.add(('m0', 0))
        elif op.startswith(('buffer_', 'global_', 'flat_')):
            self.kind = 'vmem'
            lds = bool(re.search(r'\blds\b', rest)) or '_lds_' in op
            if 'load' in op and not lds:
                self.w = R[0]; self.r = set().union(*R[1:])
                if 'd16' in op: self.r |= R[0]
            elif 'atomic' in op and 'sc0' in rest:
                self.w = R[0]; self.r = allr
            else: self.r = allr
            if lds: self.r.add(('m0', 0));
            self.ldsdma = lds
            self.widestore = 'store' in op and ('x3' in op or 'x4' in op)
            if self.widestore:
                self.sdata = R[0] if op.startswith('buffer_') else R[1]
        elif op.startswith('s_'):
            self.kind = 'salu'
            if op.startswith(('s_cmp', 's_cbranch', 's_branch', 's_waitcnt', 's_barrier', 's_endpgm', 's_sleep', 's_setprio', 's_bitcmp')):
                self.r = allr
            else:
                self.w = R[0] if R else set(); self.r = set().union(*R[1:]) if len(R) > 1 else set()
                if 'saveexec' in op: self.w = self.w | {('exec', 0)}

def need(prod, cons):
    n = 0
    isv = lambda S: {x for x in S if x[0] in 'va'}
    iss = lambda S: {x for x in S if x[0] in ('s', 'vcc')}
    if prod.kind == 'valu':
        pv, ps = isv(prod.w), iss(prod.w)
        if cons.kind == 'mfma' and pv & cons.r: n = max(n, 2)
        if prod.op.startswith('v_dot') and pv & (cons.r | cons.w):
            same_c = cons.op == prod.op and cons.w == prod.w and not (pv & set().union(*[regs_of(o) for o in cons.ops[1:3]]))
            if not same_c: n = max(n, 3)
        if cons.kind == 'valu':
            if prod.trans and not cons.trans and pv & cons.r: n = max(n, 1)
            if cons.dpp and pv & cons.r: n = max(n, 2)
            if 'permlane' in cons.op and pv & cons.r: n = max(n, 2)
            if cons.op.startswith(('v_readlane', 'v_readfirstlane')) and pv & cons.r: n = max(n, 1)
            if ps & cons.r: n = max(n, 4 if cons.op.startswith(('v_readlane', 'v_writelane')) else 2)
            if ('exec', 0) in prod.w: n = max(n, 5 if cons.dpp else 4 if ('lane' in cons.op) else 0)
        if cons.kind == 'vmem' and ps & cons.r: n = max(n, 5)
        if cons.kind == 'salu' and ps & cons.r: n = max(n, 1)
        if cons.kind == 'mfma' and ('exec', 0) in prod.w: n = max(n, 4)
    if prod.kind == 'mfma':
        p = prod.passes
        if cons.kind == 'mfma':
            if prod.w & (cons.a | cons.b): n = max(n, 8 if p == 4 else 12)
            if prod.w & cons.c and not (prod.w == cons.c and cons.passes == p): n = max(n, 6 if p == 4 else 10)
        elif cons.kind == 'valu':
            if prod.w & (cons.r | cons.w): n = max(n, 8 if p == 4 else 12)
            if prod.c & cons.w: n = max(n, 3 if p == 4 else 7)
        elif cons.kind in ('ds', 'vmem'):
            if prod.w & (cons.r | cons.w): n = max(n, 8 if p == 4 else 12)
    if prod.kind == 'salu' and ('m0', 0) in prod.w:
        if (cons.kind == 'vmem' and getattr(cons, 'ldsdma', False)) or (cons.kind == 'ds' and 'addtid' in cons.op): n = max(n, 1)
    if prod.kind == 'vmem' and getattr(prod, 'widestore', False):
        if prod.sdata & cons.w: n = max(n, 2 if cons.kind in ('valu', 'mfma') else 1)
    return n

class Asm:
    def __init__(self):
        self.ins = []
        self.nops = 0
    def __call__(self, text):
        for line in text.split('\n'):
            line = line.strip()
            if line: self._emit(line)
    def _emit(self, line):
        if line.startswith(';'):
            i = Ins(''); i.text = line; self.ins.append(i); return
        c = Ins(line)
        if c.states:
            dist = 0; req = 0
            for p in reversed(self.ins):
                if dist >= 20: break
                if p.states == 0: continue
                k = need(p, c)
                if k > dist: req = max(req, k - dist)
                dist += p.states
            while req > 0:
                k = min(req, 16)
                self.ins.append(Ins(f's_nop {k-1}')); self.nops += 1; req -= k
        self.ins.append(c)
    def text(self):
        out = []
        for i in self.ins:
            out.append(i.text if (i.label or i.directive) else '    ' + i.text)
        return '\n'.join(out) + '\n'

def vr(a, n=1, k='v'):
    return f'{k}{a}' if n == 1 else f'{k}[{a}:{a+n-1}]'
def ar(a, n=1): return vr(a, n, 'a')
def sr(a, n=1): return vr(a, n, 's')

KD = """.section .rodata,"a"
.p2align 6
.amdhsa_kernel {name}
  .amdhsa_next_free_vgpr {vgpr}
  .amdhsa_next_free_sgpr 102
  .amdhsa_accum_offset {acc}
  .amdhsa_group_segment_fixed_size 0
  .amdhsa_kernarg_size 128
  .amdhsa_user_sgpr_count 2
  .amdhsa_user_sgpr_kernarg_segment_ptr 1
  .amdhsa_system_sgpr_workgroup_id_x 1
.end_amdhsa_kernel
"""
```

```python
from asmlib import *
import math

WS_HT = 0
WS_ST1 = 0x290000
WS_CS = 0x298000
WS_ST2 = 0x2A0000
WS_FL2 = 0x2A8000
WS_HM = 0x300000

P_X, P_ARE, P_AIM, P_BRE, P_BIM, P_CRE, P_CIM, P_LDT = 16, 18, 20, 22, 24, 26, 28, 30
P_DSK, P_BX, P_W1, P_W3, P_W2, P_OUT, P_DBG, P_WS = 32, 34, 36, 38, 40, 42, 44, 46

TABP = 272
TABSZ = 53 * TABP
L_TAB = 0
L_KX = 4 * TABSZ
KXSZ = 8320
KC1 = 4160
L_U = L_KX + 4 * KXSZ
UP = 4608
L_BASE = L_U + 4 * UP
LDS_A = L_BASE + 4 * 8192

LOG2E = 1.4426950408889634
def f2h(x):
    import struct
    return hex(struct.unpack('<I', struct.pack('<f', x))[0])

def cmul(A, D, X, Y, T):
    A(f"v_pk_mul_f32 {vr(T,2)}, {vr(X,2)}, {vr(Y,2)} op_sel_hi:[1,0]")
    A(f"v_pk_fma_f32 {vr(D,2)}, {vr(X,2)}, {vr(Y,2)}, {vr(T,2)} op_sel:[1,1,0] op_sel_hi:[0,1,1] neg_lo:[1,0,0]")

def gen_A(name="kA_kernel", end_label="L_code_end"):
    A = Asm()
    sW, sK, sJ, sCG, sD = 48, 49, 50, 51, 52
    sMASK, sONES = 53, 54
    A(f"{name}:")
    A("s_cmp_ge_u32 s2, 0x100\ns_cbranch_scc1 LA_exit")
    A("s_load_dwordx16 s[16:31], s[0:1], 0\ns_load_dwordx16 s[32:47], s[0:1], 64")
    A(f"v_lshrrev_b32 v2, 6, v0\nv_and_b32 v1, 63, v0")
    A(f"s_and_b32 s{sK}, s2, 7\ns_lshr_b32 s{sJ}, s2, 3")
    A(f"v_readfirstlane_b32 s{sW}, v2")
    A(f"s_mov_b32 s{sMASK}, 0xffff0000\ns_mov_b32 s{sONES}, 0x3f803f80")
    A(f"s_cmp_lt_u32 s{sJ}, 20\ns_cbranch_scc1 LA_conv")
    A(f"s_cmp_ge_u32 s{sJ}, 28\ns_cbranch_scc1 LA_colsum")
    sP = 55
    A(f"s_sub_u32 s{sP}, s{sJ}, 20\ns_lshl_b32 s{sP}, s{sP}, 3\ns_add_u32 s{sP}, s{sP}, s{sK}")
    A(f"s_lshl_b32 s56, s{sP}, 5\ns_lshl_b32 s57, s{sW}, 3\ns_add_u32 s56, s56, s57\ns_mul_i32 s56, s56, 1280")
    A(f"v_lshrrev_b32 v3, 4, v1\nv_mul_u32_u24 v4, 1280, v3\nv_and_b32 v5, 15, v1\nv_lshl_add_u32 v4, v5, 4, v4\nv_add_u32 v4, s56, v4\nv_add_u32 v6, 5120, v4")
    A("s_waitcnt lgkmcnt(0)")
    for i in range(2):
        for q in range(5):
            A(f"global_load_dwordx4 {vr(10+20*i+4*q,4)}, v{4 if i==0 else 6}, s[{P_X}:{P_X+1}] offset:{256*q}")
    for i in range(2):
        A(f"v_mov_b32 v{50+2*i}, 0\nv_mov_b32 v{51+2*i}, 0")
    for i in range(2):
        for q in range(5):
            A(f"s_waitcnt vmcnt({9-5*i-q})")
            for e in range(4):
                x = 10 + 20 * i + 4 * q + e
                A(f"v_dot2c_f32_bf16 v{50+2*i}, s{sONES}, v{x}\nv_dot2c_f32_bf16 v{51+2*i}, v{x}, v{x}")
    for rot in (8, 4, 2, 1):
        for r in (50, 51, 52, 53):
            A(f"v_add_f32_dpp v{r}, v{r}, v{r} row_ror:{rot} row_mask:0xf bank_mask:0xf")
    A(f"s_mov_b32 s56, {f2h(1.0/640)}\ns_mov_b32 s57, {f2h(1e-5)}")
    for i in range(2):
        s_, q_ = 50 + 2 * i, 51 + 2 * i
        t = 54 + 4 * i
        A(f"v_mul_f32 v{s_}, s56, v{s_}\nv_mul_f32 v{q_}, s56, v{q_}")
        A(f"v_fma_f32 v{q_}, -v{s_}, v{s_}, v{q_}\nv_max_f32 v{q_}, 0, v{q_}")
        A(f"v_cvt_pk_bf16_f32 v{t}, v{s_}, v{q_}")
        A(f"v_lshlrev_b32 v{s_}, 16, v{t}\nv_and_b32 v{q_}, s{sMASK}, v{t}")
        A(f"v_add_f32 v{q_}, s57, v{q_}\nv_cvt_pk_bf16_f32 v{q_}, v{q_}, v{q_}\nv_and_b32 v{q_}, s{sMASK}, v{q_}")
        A(f"v_sqrt_f32 v{q_}, v{q_}\nv_cvt_pk_bf16_f32 v{q_}, v{q_}, v{q_}\nv_and_b32 v{q_}, s{sMASK}, v{q_}")
        A(f"v_rcp_f32 v{t}, v{q_}\nv_mul_f32 v{t+1}, -v{s_}, v{t}")
    A(f"s_lshl_b32 s56, s{sW}, 6\nv_lshrrev_b32 v7, 1, v3\nv_lshlrev_b32 v7, 4, v7\nv_and_b32 v8, 1, v3\nv_lshl_add_u32 v7, v8, 2, v7\nv_add_u32 v7, s56, v7")
    A("ds_write2_b32 v7, v54, v55 offset0:0 offset1:2\nds_write2_b32 v7, v58, v59 offset0:8 offset1:10")
    A("s_waitcnt lgkmcnt(0)\ns_barrier")
    A(f"s_cmp_lg_u32 s{sW}, 0\ns_cbranch_scc1 LA_side_pref")
    A(f"v_lshlrev_b32 v7, 4, v5\nds_read_b128 v[10:13], v7")
    A(f"s_lshl_b32 s56, s{sP}, 8\ns_add_u32 s56, s56, {WS_ST1}\nv_add_u32 v8, s56, v7")
    A(f"s_lshl_b32 s56, s{sP}, 2\nv_mov_b32 v9, s56\nv_mov_b32 v14, 1")
    A("s_mov_b64 exec, 0xffff\ns_waitcnt lgkmcnt(0)")
    A(f"global_store_dwordx4 v8, v[10:13], s[{P_WS}:{P_WS+1}] sc0 sc1")
    A("s_waitcnt vmcnt(0)\ns_mov_b64 exec, 1")
    A(f"global_store_dword v9, v14, s[{P_DBG}:{P_DBG+1}] sc0 sc1")
    A("s_mov_b64 exec, -1")
    A("LA_side_pref:")
    A(f"s_sub_u32 s56, s{sJ}, 20\ns_lshl_b32 s56, s56, 2\ns_add_u32 s56, s56, s{sW}")
    A(f"s_lshl_b32 s57, s{sP}, 2\ns_add_u32 s57, s57, s{sW}")
    A(f"s_lshl_b32 s58, s57, 7\ns_add_u32 s58, s58, {WS_FL2}\ns_lshl_b32 s59, s57, 6\ns_add_u32 s59, s59, {WS_ST2}")
    A("v_lshlrev_b32 v10, 2, v1\nv_add_u32 v11, s58, v10\nv_add_u32 v12, s59, v10\nv_mov_b32 v13, 0\nv_mov_b32 v14, -1")
    A(f"global_store_dword v11, v13, s[{P_WS}:{P_WS+1}]\ns_mov_b64 exec, 0xffff\nglobal_store_dword v12, v14, s[{P_WS}:{P_WS+1}]\ns_mov_b64 exec, -1")
    A(f"s_lshr_b32 s57, s{sK}, 2\ns_mul_i32 s57, s57, 640\ns_mul_i32 s58, s56, {48*1280}\ns_add_u32 s57, s57, s58")
    A(f"s_mov_b32 s58, {hex((1<<32)//5+1)}")
    for i in range(4):
        A(f"v_add_u32 v10, {64*i}, v1\nv_min_u32 v10, 239, v10\nv_mul_hi_u32 v11, v10, s58\nv_mul_u32_u24 v12, 5, v11\nv_sub_u32 v12, v10, v12")
        A(f"v_mul_u32_u24 v11, 1280, v11\nv_lshl_add_u32 v11, v12, 7, v11\nv_add_u32 v11, s57, v11")
        A(f"global_load_dword v{20+i}, v11, s[{P_W2}:{P_W2+1}]")
    A(f"s_lshr_b32 s57, s{sK}, 1\ns_lshl_b32 s57, s57, 1\ns_and_b32 s58, s{sK}, 1\ns_xor_b32 s58, s58, 1\ns_add_u32 s57, s57, s58\ns_mul_i32 s57, s57, 384")
    A(f"s_mul_i32 s58, s56, {20*3072}\ns_add_u32 s57, s57, s58\ns_mov_b32 s58, {hex((1<<32)//3+1)}")
    A(f"v_min_u32 v10, 59, v1\nv_mul_hi_u32 v11, v10, s58\nv_mul_u32_u24 v12, 3, v11\nv_sub_u32 v12, v10, v12")
    A(f"v_mul_u32_u24 v11, 3072, v11\nv_lshl_add_u32 v11, v12, 7, v11\nv_add_u32 v11, s57, v11")
    A(f"global_load_dword v24, v11, s[{P_W1}:{P_W1+1}]\nglobal_load_dword v25, v11, s[{P_W3}:{P_W3+1}]")
    A("s_waitcnt vmcnt(0)\ns_endpgm")

    A("LA_colsum:")
    A(f"s_sub_u32 s55, s{sJ}, 28\ns_lshr_b32 s56, s{sK}, 1\ns_lshl_b32 s56, s56, 1\ns_and_b32 s57, s{sK}, 1\ns_add_u32 s56, s56, s57\ns_lshl_b32 s56, s56, 1")
    A(f"s_lshr_b32 s57, s55, 1\ns_add_u32 s56, s56, s57\ns_and_b32 s55, s55, 1")
    A(f"s_mov_b32 s58, {hex((1<<32)//12+1)}\nv_min_u32 v3, 239, v0\nv_mul_hi_u32 v4, v3, s58\nv_mul_u32_u24 v5, 12, v4\nv_sub_u32 v5, v3, v5")
    A(f"s_mul_i32 s57, s56, 192\nv_mul_u32_u24 v6, 3072, v4\nv_lshl_add_u32 v6, v5, 4, v6\nv_add_u32 v6, s57, v6")
    A("s_waitcnt lgkmcnt(0)")
    A(f"s_cmp_eq_u32 s55, 0\ns_cselect_b32 s60, s{P_W1}, s{P_W3}\ns_cselect_b32 s61, s{P_W1+1}, s{P_W3+1}")
    for i in range(32):
        A(f"global_load_dwordx4 {vr(16+4*i,4)}, v6, s[60:61]")
        if i < 31: A(f"s_add_u32 s60, s60, {20*3072}\ns_addc_u32 s61, s61, 0")
    A("s_mov_b32 s62, 0x3f80\ns_mov_b32 s63, 0x3f800000")
    for e in range(8): A(f"v_mov_b32 v{8+e}, 0")
    for i in range(32):
        A(f"s_waitcnt vmcnt({31-i})")
        for e in range(4):
            A(f"v_dot2c_f32_bf16 v{8+2*e}, s62, v{16+4*i+e}\nv_dot2c_f32_bf16 v{9+2*e}, s63, v{16+4*i+e}")
    A("v_mul_u32_u24 v7, 384, v4\nv_lshl_add_u32 v7, v5, 5, v7")
    A("ds_write_b128 v7, v[8:11]\nds_write_b128 v7, v[12:15] offset:16\ns_waitcnt lgkmcnt(0)\ns_barrier")
    A("v_min_u32 v3, 95, v0\nv_lshlrev_b32 v7, 2, v3")
    for i in range(20): A(f"ds_read_b32 v{16+i}, v7 offset:{384*i}")
    A("s_waitcnt lgkmcnt(0)")
    for i in range(1, 20): A(f"v_add_f32 v16, v16, v{16+i}")
    A(f"s_mul_i32 s57, s56, 768\ns_lshl_b32 s55, s55, 6\ns_add_u32 s57, s57, s55\ns_add_u32 s57, s57, {WS_CS}")
    A("v_lshrrev_b32 v4, 4, v3\nv_lshlrev_b32 v4, 7, v4\nv_and_b32 v5, 15, v3\nv_lshl_add_u32 v4, v5, 2, v4\nv_add_u32 v4, s57, v4")
    A(f"global_store_dword v4, v16, s[{P_WS}:{P_WS+1}]")
    A("s_waitcnt vmcnt(0)\ns_endpgm")

    A("LA_conv:")
    PB = 10
    XB = 28
    A(f"s_mul_i32 s{sCG}, s{sK}, 20\ns_add_u32 s{sCG}, s{sCG}, s{sJ}\ns_lshl_b32 s{sD}, s{sCG}, 2\ns_add_u32 s{sD}, s{sD}, s{sW}")
    A(f"s_mul_i32 s55, s{sD}, 384\nv_lshl_add_u32 v3, v1, 1, s55")
    for i in range(18): A(f"v_mov_b32 v{PB+i}, 0")
    A(f"s_mul_i32 s55, s{sW}, {512*1280}\ns_lshl_b32 s56, s{sCG}, 3\ns_add_u32 s55, s55, s56\ns_movk_i32 s57, 10240")
    A(f"v_mul_lo_u32 v4, v1, s57\nv_add_u32 v4, s55, v4\nv_add_u32 v5, 5120, v4")
    A("s_waitcnt lgkmcnt(0)")
    A(f"s_add_u32 s58, s{P_LDT}, s56\ns_addc_u32 s59, s{P_LDT+1}, 0\ns_add_u32 s60, s{P_DSK}, s56\ns_addc_u32 s61, s{P_DSK+1}, 0")
    A("s_load_dwordx2 s[62:63], s[58:59], 0\ns_load_dwordx2 s[64:65], s[60:61], 0")
    for p in range(3):
        for a, ptr in enumerate((P_ARE, P_AIM, P_BRE, P_BIM, P_CRE, P_CIM)):
            A(f"global_load_short_d16_hi v{PB+6*p+a}, v3, s[{ptr}:{ptr+1}] offset:{128*p}")
    for i in range(8):
        A(f"global_load_dwordx2 {vr(XB+2*i,2)}, v{4 if i<4 else 5}, s[{P_X}:{P_X+1}] offset:{1280*(i&3)}")
    A("s_getpc_b64 s[66:67]\nLA_pc:")
    A(f"s_lshl_b32 s55, s{sW}, 13\nv_lshl_add_u32 v6, v1, 7, s55\nv_min_u32 v6, {end_label}-LA_pc-4, v6")
    A("global_load_dword v7, v6, s[66:67]")
    NPF = 1
    sTAB, sKX = 68, 69
    A(f"s_mul_i32 s{sTAB}, s{sW}, {TABSZ}\ns_mul_i32 s{sKX}, s{sW}, {KXSZ}\ns_add_u32 s{sKX}, s{sKX}, {L_KX}")
    vFR = 8
    A(f"v_and_b32 v2, 31, v1\nv_mul_u32_u24 v{vFR}, {TABP}, v2\nv_lshrrev_b32 v9, 5, v1\nv_lshl_add_u32 v{vFR}, v9, 4, v{vFR}\nv_add_u32 v{vFR}, s{sTAB}, v{vFR}")
    A("v_mov_b32 v44, 0\nv_mov_b32 v45, 0\nv_mov_b32 v46, 0\nv_mov_b32 v47, 0")
    A(f"s_mul_i32 s55, s{sW}, {UP}\ns_add_u32 s55, s55, {L_U}\nv_min_u32 v48, 29, v1\nv_lshl_add_u32 v48, v48, 4, s55\nds_write_b128 v48, v[44:47]")
    A(f"v_and_b32 v48, 1, v1\nv_lshlrev_b32 v48, 4, v48\nv_bfe_u32 v49, v1, 1, 1\nv_mul_u32_u24 v49, {KC1}, v49\nv_add3_u32 v48, v48, v49, s{sKX}\nds_write_b128 v48, v[44:47] offset:4096")
    A("s_waitcnt lgkmcnt(0)")
    A(f"s_cmp_ge_u32 s{sW}, 2\ns_cselect_b32 s55, s63, s62\ns_bitcmp1_b32 s{sW}, 0\ns_cselect_b32 s56, 0, 16\ns_lshl_b32 s55, s55, s56\ns_and_b32 s55, s55, s{sMASK}")
    A(f"s_lshl_b32 s72, s64, 16\ns_and_b32 s73, s64, s{sMASK}\ns_lshl_b32 s74, s65, 16\ns_and_b32 s75, s65, s{sMASK}")
    vDT, vC1, vC2 = 76, 77, 78
    A(f"v_mov_b32 v{vDT}, {f2h(LOG2E)}\nv_mul_f32 v{vDT}, s55, v{vDT}\nv_exp_f32 v{vDT}, v{vDT}\nv_cvt_pk_bf16_f32 v{vDT}, v{vDT}, v{vDT}\nv_and_b32 v{vDT}, s{sMASK}, v{vDT}")
    A(f"v_mul_f32 v{vC1}, {f2h(LOG2E)}, v{vDT}\nv_mul_f32 v{vC2}, {f2h(1/(2*math.pi))}, v{vDT}")
    A(f"s_mov_b32 m0, s{sTAB}")
    W, V, Z, G0, G2, G4, G6, CUR, T, CU2 = 44, 46, 48, 50, 52, 54, 56, 58, 60, 62
    FR, KACC = 80, 144
    cv = [0]
    def put(row, X):
        c = 64 + (cv[0] & 3); cv[0] += 1
        A(f"v_cvt_pk_bf16_f32 v{c}, v{X}, v{X+1}\nds_write_addtid_b32 v{c} offset:{row*TABP}")
    def kmfma(p, st):
        C = "0" if (p == 0 and st == 0) else vr(KACC, 16)
        A(f"v_mfma_f32_32x32x16_bf16 {vr(KACC,16)}, {vr(FR+8*st,4)}, {vr(FR+8*st+4,4)}, {C}")
    for p in range(3):
        b = PB + 6 * p
        A(f"s_waitcnt vmcnt({12-6*p+8+NPF})")
        xl, yr = 68, 69
        A(f"v_mul_f32 v{xl}, v{b}, v{vC1}\nv_mul_f32 v{yr}, v{b+1}, v{vC2}")
        A(f"v_mul_f32 v{b+2}, v{b+2}, v{vDT}\nv_mul_f32 v{b+3}, v{b+3}, v{vDT}")
        for (n, D, conj) in ((1, W, 0), (8, V, 1), (256, Z, 0)):
            if n == 1: A(f"v_exp_f32 v70, v{xl}\nv_fract_f32 v71, v{yr}")
            else: A(f"v_mul_f32 v70, {f2h(float(n))}, v{xl}\nv_mul_f32 v71, {f2h(float(n))}, v{yr}\nv_exp_f32 v70, v70\nv_fract_f32 v71, v71")
            A(f"v_cos_f32 v72, v71\nv_sin_f32 v73, v71")
            A(f"v_pk_mul_f32 {vr(D,2)}, v[72:73], v[70:71] op_sel_hi:[1,0]" + (" neg_hi:[1,0]" if conj else ""))
        cmul(A, G0, b + 4, b + 2, T)
        if p > 0:
            A("s_waitcnt lgkmcnt(0)")
        pend = list(range(8)) if p > 0 else []
        def tick():
            if pend: kmfma(p - 1, pend.pop(0))
        put(0, G0); tick()
        cmul(A, CUR, G0, W, T); put(1, CUR); tick()
        cmul(A, G2, CUR, W, T); put(2, G2); tick()
        cmul(A, CUR, G2, W, T); put(3, CUR); tick()
        cmul(A, G4, CUR, W, T); put(4, G4); tick()
        cmul(A, CUR, G4, W, T); put(5, CUR); tick()
        cmul(A, G6, CUR, W, T); put(6, G6); tick()
        cmul(A, CUR, G6, W, T); put(7, CUR); tick()
        cmul(A, G0, G0, Z, T); put(8, G0)
        cmul(A, G2, G2, Z, T); put(9, G2)
        cmul(A, G4, G4, Z, T); put(10, G4)
        cmul(A, G6, G6, Z, T); put(11, G6)
        cmul(A, G0, G0, Z, T); put(12, G0)
        cmul(A, G4, G4, Z, T); put(13, G4)
        cmul(A, G0, G0, Z, T); put(14, G0)
        cmul(A, G4, G4, Z, T); put(15, G4)
        for r in range(16, 21):
            cmul(A, G0, G0, Z, T); put(r, G0)
        A(f"v_mov_b32 v67, 0x3f80\nds_write_addtid_b32 v67 offset:{21*TABP}")
        put(22, V)
        cmul(A, CUR, V, V, T); put(23, CUR)
        for r in range(3, 32):
            cmul(A, CUR, CUR, V, T); put(21 + r, CUR)
        if p == 1:
            A(f"v_and_b32 v2, 15, v1\ns_lshl_b32 s55, s{sW}, 6\nv_lshl_add_u32 v2, v2, 2, s55")
            A(f"global_load_dword v79, v2, s[{P_DBG}:{P_DBG+1}] sc0 sc1")
        for st in range(8):
            A(f"ds_read_b128 {vr(FR+8*st,4)}, v{vFR} offset:{32*st}\nds_read_b128 {vr(FR+8*st+4,4)}, v{vFR} offset:{21*TABP+32*st}")
    STV = 160
    A(f"s_lshl_b32 s55, s{sW}, 12\ns_add_u32 s55, s55, {WS_ST1}\nv_lshl_add_u32 v3, v1, 6, s55")
    A("s_mov_b32 s56, 0x100000\ns_waitcnt vmcnt(0)")
    A("LA_poll:\nv_cmp_eq_u32 vcc, 0, v79\ns_cbranch_vccz LA_got")
    A(f"global_load_dword v79, v2, s[{P_DBG}:{P_DBG+1}] sc0 sc1\ns_sub_u32 s56, s56, 1\ns_cmp_lg_u32 s56, 0\ns_waitcnt vmcnt(0)\ns_cbranch_scc1 LA_poll")
    A("LA_got:")
    for i in range(4):
        A(f"global_load_dwordx4 {vr(STV+4*i,4)}, v3, s[{P_WS}:{P_WS+1}] offset:{16*i} sc0 sc1")
    for st in range(8):
        A(f"s_waitcnt lgkmcnt({14-2*st})")
        kmfma(2, st)
    A(f"v_and_b32 v4, 31, v1\nv_lshrrev_b32 v5, 5, v1")
    A(f"v_lshlrev_b32 v6, 5, v4\nv_lshl_add_u32 v6, v5, 4, v6\nv_add_u32 v6, s{sTAB}, v6")
    A(f"v_cmp_gt_u32 vcc, 32, v1")
    A(f"v_lshlrev_b32 v7, 4, v4\nv_add_u32 v7, 1024, v7\nv_lshlrev_b32 v9, 3, v4\nv_add_u32 v10, 1536, v9\nv_add_u32 v11, 8, v7\nv_add_u32 v12, 1792, v9")
    A(f"v_cndmask_b32 v10, v10, v7, vcc\nv_cndmask_b32 v11, v12, v11, vcc\nv_add_u32 v10, s{sTAB}, v10\nv_add_u32 v11, s{sTAB}, v11")
    A(f"v_lshlrev_b32 v12, 2, v4\nv_lshl_add_u32 v12, v5, 9, v12\nv_add_u32 v12, s{sTAB}, v12")
    A(f"v_lshlrev_b32 v13, 5, v1\nv_cndmask_b32 v13, v7, v13, vcc\nv_add_u32 v13, s{sTAB}, v13")
    A(f"v_lshl_add_u32 v14, v1, 3, s{sTAB}\nv_lshl_add_u32 v15, v1, 2, s{sTAB}")
    A(f"v_lshlrev_b32 v16, 4, v1\nv_sub_u32 v16, s{sKX}, v16\nv_add_u32 v16, 1008, v16")
    A(f"ds_write_b128 v6, {vr(KACC,4)}\nds_write_b64 v10, {vr(KACC+4,2)}\nds_write_b64 v11, {vr(KACC+6,2)}")
    for q in range(4): A(f"ds_write_b32 v12, v{KACC+8+q} offset:{2048+128*q}")
    X = 80
    A(f"ds_read_b128 {vr(X,4)}, v13\nds_read_b128 {vr(X+4,4)}, v13 offset:16\nds_read_b32 v{X+8}, v13 offset:32")
    A(f"ds_read_b64 {vr(X+10,2)}, v14 offset:1536\nds_read_b32 v{X+12}, v14 offset:1544")
    A(f"v_add_u32 v15, 2048, v15\nds_read2_b32 {vr(X+14,2)}, v15 offset0:0 offset1:1\nds_read2_b32 {vr(X+16,2)}, v15 offset0:64 offset1:65")
    A(f"v_and_b32 v17, 1, v1\nv_cmp_eq_u32 s[70:71], 1, v17")
    O = 100
    def emit_copies(Kf, off):
        for i, (lo, hi) in enumerate(((7, 6), (5, 4), (3, 2), (1, 0))): A(f"v_cvt_pk_bf16_f32 v{O+i}, v{Kf(lo)}, v{Kf(hi)}")
        for i, (lo, hi) in enumerate(((8, 7), (6, 5), (4, 3), (2, 1))): A(f"v_cvt_pk_bf16_f32 v{O+4+i}, v{Kf(lo)}, v{Kf(hi)}")
        A(f"ds_write_b128 v16, {vr(O,4)} offset:{off}\nds_write_b128 v16, {vr(O+4,4)} offset:{off+KC1}")
    A("s_waitcnt lgkmcnt(4)")
    mp = [0, 0, 1, 2, 2, 2, 3, 4, 4]
    for j in range(8, 0, -1): A(f"v_cndmask_b32 v{X+20+j}, v{X+mp[j]}, v{X+j}, vcc".replace(f"v{X+20+j}", f"v{110+j}"))
    emit_copies(lambda j: X if j == 0 else 110 + j, 3072)
    A(f"v_cvt_pk_bf16_f32 v119, v{X}, 0\nv_mov_b32 v120, s{sKX}\ns_mov_b64 exec, 1\nds_write_b32 v120, v119 offset:{KC1+4096}\ns_mov_b64 exec, -1")
    O = 124
    A("s_waitcnt lgkmcnt(5)")
    emit_copies(lambda j: X + 10 + [0, 0, 0, 1, 1, 1, 2, 2, 2][j], 2048)
    O = 100
    A("s_waitcnt lgkmcnt(5)")
    A(f"v_cndmask_b32 v121, v{X+14}, v{X+15}, s[70:71]\nv_cndmask_b32 v122, v{X+16}, v{X+17}, s[70:71]")
    emit_copies(lambda j: 121 if j == 4 else X + 14 + (j > 4), 1024)
    O = 124
    emit_copies(lambda j: 122 if j == 4 else X + 16 + (j > 4), 0)
    A(f"s_lshl_b32 s55, s{sW}, 10\ns_add_u32 s55, s55, {L_U+480}\nv_lshl_add_u32 v4, v1, 4, s55")
    A(f"s_lshl_b32 s55, s{sW}, 11\ns_add_u32 s55, s55, {L_BASE}\nv_lshl_add_u32 v5, v1, 5, s55")
    A("s_waitcnt vmcnt(0)")
    for ch in range(4):
        xs, uu, bb, up = 44, 52, 60 + 12 * (ch & 1), 68 + 12 * (ch & 1)
        for r in range(8):
            src = XB + 2 * r + (ch >> 1)
            A(f"v_and_b32 v{xs+r}, s{sMASK}, v{src}" if ch & 1 else f"v_lshlrev_b32 v{xs+r}, 16, v{src}")
        for rp in range(4):
            A(f"v_pk_fma_f32 {vr(uu+2*rp,2)}, {vr(xs+2*rp,2)}, {vr(STV+4*rp,2)}, {vr(STV+4*rp+2,2)}")
        for rp in range(4):
            A(f"v_pk_fma_f32 {vr(bb+2*rp,2)}, {vr(uu+2*rp,2)}, s[{72+(ch&2)}:{73+(ch&2)}], {vr(xs+2*rp,2)} op_sel:[0,{ch&1},0] op_sel_hi:[1,{ch&1},1]")
            A(f"v_cvt_pk_bf16_f32 v{up+rp}, v{uu+2*rp}, v{uu+2*rp+1}")
        A(f"ds_write_b128 v4, {vr(up,4)} offset:{ch*UP}\nds_write_b128 v5, {vr(bb,4)} offset:{ch*8192}\nds_write_b128 v5, {vr(bb+4,4)} offset:{ch*8192+16}")
    vA0, vB, vC = 2, 6, 7
    A(f"v_and_b32 v8, 15, v1\nv_lshrrev_b32 v9, 4, v1")
    A(f"v_add_u32 v10, 1, v8\nv_lshrrev_b32 v10, 1, v10\nv_lshlrev_b32 v11, 2, v9\nv_sub_u32 v10, v11, v10\nv_lshlrev_b32 v10, 2, v10")
    A(f"v_and_b32 v11, 1, v8\nv_xor_b32 v11, 1, v11\nv_mul_u32_u24 v11, {KC1}, v11\nv_add3_u32 v10, v10, v11, s{sKX}")
    A(f"s_mul_i32 s55, s{sW}, {UP}\ns_add_u32 s55, s55, {L_U}\nv_lshlrev_b32 v12, 5, v8\nv_lshl_add_u32 v12, v9, 4, v12")
    A(f"s_lshl_b32 s56, s{sW}, 13\ns_add_u32 s56, s56, {L_BASE}\nv_lshlrev_b32 v13, 6, v8\nv_lshl_add_u32 v13, v9, 4, v13")
    A("s_waitcnt lgkmcnt(0)\ns_barrier")
    for be in range(4): A(f"v_add_u32 v{vA0+be}, {4064-448-512*(2*be+1)}, v10")
    A(f"v_add_u32 v{vB}, s55, v12\nv_add_u32 v{vC}, s56, v13")
    ACC = 160
    SET = [32, 96]
    def loads(rho):
        s = SET[rho & 1]; L = []
        for i in range(8):
            dl = i
            o = 16 * rho + (128 if dl % 2 == 0 else 0)
            a = s + 4 * dl
            L.append(f"ds_read2_b32 {vr(a,2)}, v{vA0+(dl>>1)} offset0:{o} offset1:{o+1}")
            L.append(f"ds_read2_b32 {vr(a+2,2)}, v{vA0+(dl>>1)} offset0:{o+2} offset1:{o+3}")
            L.append(f"ds_read_b128 {vr(s+32+4*i,4)}, v{vB} offset:{512*i+64*rho}")
        return L
    for T in range(8): A(f"ds_read_b128 {vr(ACC+4*T,4)}, v{vC} offset:{1024*T}")
    for l in loads(0): A(l)
    A(f"v_lshrrev_b32 v10, 3, v8\ns_mov_b32 s55, 163840\nv_mul_lo_u32 v10, v10, s55\nv_and_b32 v11, 7, v8\nv_lshl_add_u32 v10, v11, 5, v10\nv_lshl_add_u32 v10, v9, 3, v10")
    A(f"s_lshl_b32 s55, s{sD}, 8\nv_add_u32 v10, s55, v10")
    for rho in range(8):
        s = SET[rho & 1]
        A("s_waitcnt lgkmcnt(0)")
        L = loads(rho + 1) if rho < 7 else []
        n = 0
        for c in range(8):
            for T in range(c, 8):
                A(f"v_mfma_f32_16x16x32_bf16 {vr(ACC+4*T,4)}, {vr(s+4*(T-c),4)}, {vr(s+32+4*c,4)}, {vr(ACC+4*T,4)}")
                if L and n < 30 and n % 5 != 4: A(L.pop(0))
                n += 1
        assert not L
    A(f"s_add_u32 s58, s{P_WS}, {WS_HT}\ns_addc_u32 s59, s{P_WS+1}, 0")
    for T in range(8):
        o = 32 + 2 * T
        A(f"v_cvt_pk_bf16_f32 v{o}, v{ACC+4*T}, v{ACC+4*T+1}\nv_cvt_pk_bf16_f32 v{o+1}, v{ACC+4*T+2}, v{ACC+4*T+3}")
        A(f"global_store_dwordx2 v10, {vr(o,2)}, s[58:59]")
        if T < 7: A(f"s_add_u32 s58, s58, 327680\ns_addc_u32 s59, s59, 0")
    A("LA_exit:\ns_endpgm")
    return A

if __name__ == "__main__":
    A = gen_A()
    print(A.text()); print("; nops", A.nops, len(A.ins))
```

```python
from asmlib import *
from kA import WS_HT, WS_CS, WS_ST2, WS_FL2, WS_HM, f2h, LOG2E
from kA import P_W1, P_W3, P_W2, P_OUT, P_DBG, P_WS

NS = 7
SLOT = 20736
UOFF = 6176
L_MISC = NS * SLOT
L_RES = L_MISC + 256
LDS_B = L_RES + 12288
QUART = 5184

class Q:
    def __init__(self, A, name, cap): self.A, self.name, self.cap, self.q = A, name, cap, []
    def add(self, tag): self.q.append(tag)
    def count_after(self, tag):
        idx = max(i for i, t in enumerate(self.q) if t == tag)
        return len(self.q) - 1 - idx
    def wait(self, tag):
        n = self.count_after(tag)
        assert n <= self.cap, (self.name, tag, n)
        self.A(f"s_waitcnt {self.name}({n})")
        self.q = self.q[len(self.q) - n:]
    def wait_all(self):
        self.A(f"s_waitcnt {self.name}(0)"); self.q = []

def gen_B(name="kB_kernel", stamp=None):
    A = Asm()
    VM = Q(A, "vmcnt", 63)
    sH, sWt, sW2, sHM = 48, 52, 56, 60
    sW, sK, sJ, sRB, sNS, sHALF, sCT = 64, 65, 66, 67, 68, 69, 70
    sMH, sMW, sSH, sSW, sS2, sMQ, sMASK, sONES = 71, 72, 73, 74, 75, 76, 77, 78
    T0, T1, T2, T3 = 80, 81, 82, 83
    def st(i):
        if stamp: stamp(A, i)
    A(f"{name}:")
    A("s_cmp_ge_u32 s2, 0x100\ns_cbranch_scc1 LB_exit")
    st(0)
    A("s_load_dwordx16 s[32:47], s[0:1], 64")
    A("v_lshrrev_b32 v2, 6, v0\nv_and_b32 v1, 63, v0")
    A(f"s_and_b32 s{sK}, s2, 7\ns_lshr_b32 s{sJ}, s2, 3")
    A(f"v_readfirstlane_b32 s{sW}, v2")
    A(f"s_and_b32 s{T0}, s{sK}, 1\ns_lshl_b32 s{T0}, s{T0}, 3\ns_and_b32 s{T1}, s{sJ}, 7\ns_add_u32 s{sRB}, s{T0}, s{T1}")
    A(f"s_lshr_b32 s{T0}, s{sK}, 1\ns_lshr_b32 s{T1}, s{sJ}, 3\ns_lshl_b32 s{T2}, s{T0}, 2\ns_add_u32 s{sNS}, s{T2}, s{T1}")
    A(f"s_and_b32 s{sHALF}, s{T0}, 1\ns_lshr_b32 s{T2}, s{T0}, 1\ns_lshl_b32 s{T2}, s{T2}, 2\ns_add_u32 s{sCT}, s{T2}, s{T1}")
    A(f"s_mov_b32 s{sMASK}, 0xffff0000\ns_mov_b32 s{sONES}, 0x3f803f80")
    vHs, vWs = 2, 3
    A(f"v_lshrrev_b32 v28, 4, v1\nv_and_b32 v29, 15, v1\nv_lshlrev_b32 v30, 2, v28\nv_xor_b32 v30, v29, v30")
    A(f"s_lshl_b32 s{sMH}, s{sW}, 11\nv_lshlrev_b32 v{vHs}, 8, v28\nv_lshl_add_u32 v{vHs}, v30, 4, v{vHs}\nv_add_u32 v{vHs}, s{sMH}, v{vHs}")
    A(f"s_and_b32 s{T0}, s{sW}, 1\ns_mul_i32 s{T1}, s{T0}, {16*3072}\ns_mul_i32 s{T2}, s{sNS}, 192\ns_add_u32 s{T1}, s{T1}, s{T2}\ns_mov_b32 s{T2}, {hex((1<<32)//12+1)}")
    for i in range(3):
        A(f"v_add_u32 v30, {64*i}, v1\nv_mul_hi_u32 v31, v30, s{T2}\nv_mul_u32_u24 v18, 12, v31\nv_sub_u32 v30, v30, v18")
        A(f"v_mul_u32_u24 v31, 3072, v31\nv_lshl_add_u32 v31, v30, 4, v31\nv_add_u32 v{vWs+i}, s{T1}, v31")
        if i: A(f"v_subrev_u32 v{vWs+i}, {1024*i}, v{vWs+i}")
    A(f"s_mul_i32 s{sMW}, s{T0}, 3072\ns_lshr_b32 s{T1}, s{sW}, 1\ns_mul_i32 s{T1}, s{T1}, {UOFF}\ns_add_u32 s{sMW}, s{sMW}, s{T1}\ns_add_u32 s{sMW}, s{sMW}, 8192")
    A(f"s_mul_i32 s{T0}, s{sW}, {192*256}\ns_lshl_b32 s{T1}, s{sNS}, 4\ns_add_u32 s{T0}, s{T0}, s{T1}\nv_lshl_add_u32 v18, v1, 8, s{T0}")
    A("s_waitcnt lgkmcnt(0)")
    A(f"s_mul_i32 s{T0}, s{sRB}, 163840\ns_add_u32 s{sH}, s{P_WS}, s{T0}\ns_addc_u32 s{sH+1}, s{P_WS+1}, 0\ns_mov_b32 s{sH+2}, 163840\ns_mov_b32 s{sH+3}, 0x20000")
    A(f"s_cmp_lt_u32 s{sW}, 2\ns_cselect_b32 s{sWt}, s{P_W1}, s{P_W3}\ns_cselect_b32 s{sWt+1}, s{P_W1+1}, s{P_W3+1}\ns_mov_b32 s{sWt+2}, 1966080\ns_mov_b32 s{sWt+3}, 0x20000")
    A(f"s_mul_i32 s{sMQ}, s{sW}, 3072\ns_add_u32 m0, s{sMQ}, {6*SLOT}\ns_mov_b32 s{T0}, 15360\ns_mov_b32 s{T1}, 30720")
    for i, so in enumerate(("0", f"s{T0}", f"s{T1}")):
        A(f"buffer_load_dwordx4 v18, s[{sH}:{sH+3}], {so} offen offset:{1024*i} lds"); VM.add("stat")
    A(f"s_mov_b32 s{sSH}, 0\ns_mov_b32 s{sSW}, 0")
    def dma_stage(s):
        sl = (s % NS) * SLOT
        L = []
        L.append(f"s_add_u32 m0, s{sMH}, {sl}")
        L.append((f"buffer_load_dwordx4 v{vHs}, s[{sH}:{sH+3}], s{sSH} offen lds", f"st{s}"))
        L.append((f"buffer_load_dwordx4 v{vHs}, s[{sH}:{sH+3}], s{sSH} offen offset:1024 lds", f"st{s}"))
        L.append(f"s_add_u32 m0, s{sMW}, {sl}\ns_add_u32 s{sSH}, s{sSH}, 8192")
        for i in range(3):
            L.append((f"buffer_load_dwordx4 v{vWs+i}, s[{sWt}:{sWt+3}], s{sSW} offen offset:{1024*i} lds", f"st{s}"))
        L.append(f"s_add_u32 s{sSW}, s{sSW}, 98304")
        return L
    def emit(x):
        if isinstance(x, tuple): A(x[0]); VM.add(x[1])
        else: A(x)
    for s in range(NS - 1):
        for x in dma_stage(s): emit(x)
    A(f"s_mul_i32 s{T0}, s{sCT}, {80*256}\ns_lshl_b32 s{T1}, s{sHALF}, 7\ns_add_u32 s{T0}, s{T0}, s{T1}\ns_mul_i32 s{T1}, s{sW}, {24*256}\ns_add_u32 s{T0}, s{T0}, s{T1}")
    A(f"v_lshrrev_b32 v30, 3, v1\nv_lshlrev_b32 v30, 8, v30\nv_and_b32 v31, 7, v1\nv_lshl_add_u32 v30, v31, 4, v30\nv_add_u32 v19, s{T0}, v30")
    A(f"s_add_u32 m0, s{sMQ}, {L_RES}\ns_movk_i32 s{T0}, 1024\ns_movk_i32 s{T1}, 2048")
    for i, so in enumerate(("0", f"s{T0}", f"s{T1}")):
        A(f"buffer_load_dwordx4 v19, s[{sH}:{sH+3}], {so} offen offset:{1024*i} lds"); VM.add("res")
    A(f"s_mov_b32 s{sW2}, s{P_W2}\ns_mov_b32 s{sW2+1}, s{P_W2+1}\ns_mov_b32 s{sW2+2}, 1966080\ns_mov_b32 s{sW2+3}, 0x20000")
    A(f"s_add_u32 s{sHM}, s{P_WS}, {WS_HM}\ns_addc_u32 s{sHM+1}, s{P_WS+1}, 0\ns_mov_b32 s{sHM+2}, 6291456\ns_mov_b32 s{sHM+3}, 0x20000")
    vH, vWr = 6, 12
    A("v_bfe_u32 v29, v1, 2, 2\nv_and_b32 v30, 3, v1\nv_lshrrev_b32 v31, 1, v28\nv_lshl_add_u32 v31, v31, 3, v29")
    A(f"v_and_b32 v18, 1, v28\ns_lshr_b32 s{T0}, s{sW}, 1\ns_lshl_b32 s{T0}, s{T0}, 1")
    A(f"v_lshlrev_b32 v19, 8, v31\nv_lshl_add_u32 v19, v18, 5, v19\nv_lshl_add_u32 v19, v30, 3, v19")
    for ti in range(2):
        A(f"s_add_u32 s{T1}, s{T0}, {ti}\nv_xor_b32 v15, s{T1}, v29\nv_lshl_add_u32 v{vH+ti}, v15, 6, v19")
        for win in (1, 2): A(f"v_add_u32 v{vH+2*win+ti}, {3*SLOT*win}, v{vH+ti}")
    A(f"v_mul_u32_u24 v19, 192, v31\nv_mul_u32_u24 v15, {UOFF}, v18\nv_add_u32 v19, v19, v15\nv_lshl_add_u32 v19, v30, 3, v19")
    A(f"s_and_b32 s{T0}, s{sW}, 1\ns_mul_i32 s{T0}, s{T0}, 96\ns_add_u32 s{T0}, s{T0}, 8192\nv_add_u32 v{vWr}, s{T0}, v19")
    for win in (1, 2): A(f"v_add_u32 v{vWr+win}, {3*SLOT*win}, v{vWr}")
    vW2s, vW2r, vHMs, vHMl = 20, 25, 26, 27
    A(f"s_mul_i32 s{T0}, s{sCT}, 160\ns_mov_b32 s{T2}, {hex((1<<32)//10+1)}")
    for i in range(5):
        A(f"v_add_u32 v15, {64*i}, v1\nv_mul_hi_u32 v16, v15, s{T2}\nv_mul_u32_u24 v17, 10, v16\nv_sub_u32 v15, v15, v17")
        A(f"v_mul_u32_u24 v16, 1280, v16\nv_lshl_add_u32 v16, v15, 4, v16\nv_add_u32 v{vW2s+i}, s{T0}, v16")
        if 0 < i < 4: A(f"v_subrev_u32 v{vW2s+i}, {1024*i}, v{vW2s+i}")
    A(f"s_mul_i32 s{sS2}, s{sW}, {384*1280}\ns_mul_i32 s{sMQ}, s{sW}, {QUART}")
    A(f"v_lshrrev_b32 v15, 1, v28\nv_lshlrev_b32 v15, 4, v15\nv_lshl_add_u32 v15, v18, 2, v15\nv_add_u32 v15, v15, v29\nv_mul_u32_u24 v15, 160, v15\nv_lshl_add_u32 v15, v30, 3, v15\nv_add_u32 v{vW2r}, s{sMQ}, v15")
    A(f"v_lshrrev_b32 v15, 5, v1\nv_lshlrev_b32 v15, 11, v15\nv_and_b32 v16, 31, v1\nv_lshl_add_u32 v15, v16, 4, v15\ns_lshr_b32 s{T0}, s{sW}, 1\ns_lshl_b32 s{T0}, s{T0}, 10\nv_add_u32 v{vHMs}, s{T0}, v15")
    A(f"v_lshlrev_b32 v15, 11, v28\nv_and_b32 v16, 15, v1\nv_lshl_add_u32 v15, v16, 4, v15\ns_lshl_b32 s{T0}, s{sHALF}, 10\nv_add_u32 v{vHMl}, s{T0}, v15")
    FRB = 128
    A(f"s_mul_i32 s{T0}, s{sW}, 3072\ns_add_u32 s{T0}, s{T0}, {6*SLOT}\nv_lshl_add_u32 v15, v1, 3, s{T0}")
    A("v_mov_b32 v16, 0\nv_mov_b32 v17, 0")
    VM.wait("stat")
    st(1)
    for n in range(6): A(f"ds_read_b64_tr_b16 {vr(FRB+2*n,2)}, v15 offset:{512*n}")
    A("s_waitcnt lgkmcnt(0)")
    for n in range(12): A(f"v_dot2c_f32_bf16 v16, s{sONES}, v{FRB+n}\nv_dot2c_f32_bf16 v17, v{FRB+n}, v{FRB+n}")
    for r in (16, 17): A(f"v_add_f32_dpp v{r}, v{r}, v{r} row_ror:8 row_mask:0xf bank_mask:0xf")
    for sw in ("v_permlane16_swap_b32", "v_permlane32_swap_b32"):
        A("v_mov_b32 v18, v16\nv_mov_b32 v19, v17")
        A(f"{sw} v16, v18\n{sw} v17, v19\nv_add_f32 v16, v16, v18\nv_add_f32 v17, v17, v19")
    A(f"v_and_b32 v15, 7, v1\nv_lshlrev_b32 v15, 3, v15\ns_lshl_b32 s{T0}, s{sW}, 6\nv_add_u32 v18, s{T0}, v15\nv_add_u32 v18, {L_MISC}, v18\nds_write_b64 v18, v[16:17]")
    A(f"v_add_u32 v15, {L_MISC}, v15")
    ACC = 32
    def reads(s):
        win, sl = (s % NS) // 3, ((s % NS) % 3) * SLOT
        f = FRB + 40 * (s & 1); L = []
        for ks in range(2):
            for fi in range(3):
                for sec in range(2):
                    L.append(f"ds_read_b64_tr_b16 {vr(f+20*ks+4*fi+2*sec,2)}, v{vWr+win} offset:{sl+(16*ks+4*sec)*192+32*fi}")
                if fi < 2:
                    ti = fi
                    for sec in range(2):
                        L.append(f"ds_read_b64_tr_b16 {vr(f+20*ks+12+4*ti+2*sec,2)}, v{vH+2*win+ti} offset:{sl+(16*ks+4*sec)*256}")
        return L
    def mfmas(s):
        f = FRB + 40 * (s & 1); L = []
        for ks in range(2):
            for fi in range(3):
                for ti in range(2):
                    c = ACC + 16 * (2 * fi + ti)
                    C = "0" if (s == 0 and ks == 0) else vr(c, 16)
                    L.append(f"v_mfma_f32_32x32x16_bf16 {vr(c,16)}, {vr(f+20*ks+4*fi,4)}, {vr(f+20*ks+12+4*ti,4)}, {C}")
        return L
    def w2slot(i): return (13 + i % 6) % NS
    def w2dma(i):
        sl = w2slot(i) * SLOT; L = [f"s_add_u32 m0, s{sMQ}, {sl}"]
        for k in range(4):
            L.append((f"buffer_load_dwordx4 v{vW2s+k}, s[{sW2}:{sW2+3}], s{sS2} offen offset:{1024*k} lds", f"w2_{i}"))
        L.append(f"s_add_u32 m0, s{sMQ}, {sl+4096}")
        L.append((f"buffer_load_dwordx4 v{vW2s+4}, s[{sW2}:{sW2+3}], s{sS2} offen lds", f"w2_{i}"))
        L.append(f"s_add_u32 s{sS2}, s{sS2}, {32*1280}")
        return L
    CS = 208
    for s in range(20):
        VM.wait(f"st{s}")
        A("s_waitcnt lgkmcnt(0)\ns_barrier")
        if s == 0: st(2)
        D = dma_stage(s + NS - 1) if s + NS - 1 < 20 else w2dma(s - 14)
        R = reads(s)
        M = mfmas(s - 1) if s > 0 else []
        if s == 0:
            for x in R: A(x)
            for x in D: emit(x)
            for i in range(4): A(f"ds_read_b64 {vr(CS+2*i,2)}, v15 offset:{64*i}")
            A("s_waitcnt lgkmcnt(0)")
            A(f"v_pk_add_f32 {vr(CS,2)}, {vr(CS,2)}, {vr(CS+2,2)}\nv_pk_add_f32 {vr(CS+4,2)}, {vr(CS+4,2)}, {vr(CS+6,2)}\nv_pk_add_f32 {vr(CS,2)}, {vr(CS,2)}, {vr(CS+4,2)}")
            a, q = CS, CS + 1
            A(f"s_mov_b32 s{T0}, {f2h(1.0/640)}\ns_mov_b32 s{T1}, {f2h(1e-5)}")
            A(f"v_mul_f32 v{a}, s{T0}, v{a}\nv_mul_f32 v{q}, s{T0}, v{q}\nv_fma_f32 v{q}, -v{a}, v{a}, v{q}\nv_max_f32 v{q}, 0, v{q}")
            A(f"v_cvt_pk_bf16_f32 v{q}, v{q}, v{q}\nv_and_b32 v{q}, s{sMASK}, v{q}\nv_add_f32 v{q}, s{T1}, v{q}")
            A(f"v_cvt_pk_bf16_f32 v{q}, v{q}, v{q}\nv_and_b32 v{q}, s{sMASK}, v{q}\nv_sqrt_f32 v{q}, v{q}\nv_cvt_pk_bf16_f32 v{a}, v{a}, v{q}")
            A(f"s_lshl_b32 s{T0}, s{sRB}, 9\ns_lshl_b32 s{T1}, s{sNS}, 5\ns_add_u32 s{T0}, s{T0}, s{T1}\ns_add_u32 s{T0}, s{T0}, {WS_ST2}")
            A(f"v_and_b32 v18, 7, v1\nv_lshl_add_u32 v18, v18, 2, s{T0}\ns_mov_b64 exec, 0xff")
            A(f"global_store_dword v18, v{a}, s[{P_WS}:{P_WS+1}] sc0 sc1\ns_mov_b64 exec, -1"); VM.add("pub")
            A(f"s_lshl_b32 s{T0}, s{sRB}, 9\ns_lshr_b32 s{T1}, s{sW}, 1\ns_lshl_b32 s{T1}, s{T1}, 8\ns_add_u32 s{T0}, s{T0}, s{T1}\ns_add_u32 s{T0}, s{T0}, {WS_ST2}")
            A(f"v_and_b32 v15, 31, v1\nv_lshl_add_u32 v15, v15, 2, s{T0}")
            A(f"s_mul_i32 s{T0}, s{sNS}, 768\ns_and_b32 s{T1}, s{sW}, 1\ns_mul_i32 s{T1}, s{T1}, 384\ns_add_u32 s{T0}, s{T0}, s{T1}\ns_add_u32 s{T0}, s{T0}, {WS_CS}")
            A(f"v_lshrrev_b32 v18, 5, v1\nv_lshl_add_u32 v18, v18, 4, s{T0}")
            continue
        if s == 15:
            for fi in range(3):
                for blk in range(4):
                    D.append((f"global_load_dwordx4 {vr(CS+16*fi+4*blk,4)}, v18, s[{P_WS}:{P_WS+1}] offset:{128*fi+32*blk}", "cs"))
        if s == 17:
            for ti in range(2):
                D.append((f"global_load_dword v{16+ti}, v15, s[{P_WS}:{P_WS+1}] offset:{128*ti} sc0 sc1", "st2"))
        nd = len(D)
        for m in range(12):
            A(M[m])
            for _ in range(2):
                if R: A(R.pop(0))
            k = -(-nd * (m + 1) // 12) - (nd - len(D))
            for _ in range(k):
                if D: emit(D.pop(0))
        assert not R and not D
    A("s_waitcnt lgkmcnt(0)")
    def w2reads(i):
        sl = w2slot(i) * SLOT
        L = [f"v_add_u32 v19, {sl}, v{vW2r}"]
        for dt in range(5):
            for sec in range(2):
                L.append(f"ds_read_b64_tr_b16 {ar(20*i+4*dt+2*sec,2)}, v19 offset:{32*dt+1280*sec}")
        return L
    M = mfmas(19)
    VM.wait("w2_2")
    R = w2reads(0) + w2reads(1) + w2reads(2)
    for m in range(12):
        A(M[m])
        for _ in range(3):
            if R: A(R.pop(0))
    st(3)
    VM.wait("st2")
    A(f"s_mov_b32 s{T0}, 0x100000")
    A("LB_p1:\nv_and_b32 v19, v16, v17\nv_cmp_eq_u32 vcc, -1, v16\nv_cmp_eq_u32 s[84:85], -1, v17\ns_or_b64 vcc, vcc, s[84:85]\ns_cbranch_vccz LB_g1")
    for ti in range(2): A(f"global_load_dword v{16+ti}, v15, s[{P_WS}:{P_WS+1}] offset:{128*ti} sc0 sc1")
    A(f"s_sub_u32 s{T0}, s{T0}, 1\ns_cmp_lg_u32 s{T0}, 0\ns_waitcnt vmcnt(0)\ns_cbranch_scc1 LB_p1\nLB_g1:")
    for ti in range(2):
        A(f"v_lshlrev_b32 v{28+2*ti}, 16, v{16+ti}\nv_xor_b32 v{28+2*ti}, 0x80000000, v{28+2*ti}\nv_and_b32 v{16+ti}, s{sMASK}, v{16+ti}")
        A(f"v_rcp_f32 v{29+2*ti}, v{16+ti}\nv_mul_f32 v{16+ti}, v{16+ti}, v{16+ti}\nv_mul_f32 v{29+2*ti}, {f2h(-LOG2E)}, v{29+2*ti}")
    A("s_waitcnt lgkmcnt(0)")
    side = w2dma(6) + w2dma(7) + w2dma(8)
    for x in side: emit(x)
    VM.wait("w2_5")
    side = w2reads(3) + w2reads(4) + w2reads(5)
    A(f"s_mul_i32 s{T0}, s{sRB}, 96\ns_mul_i32 s{T1}, s{sNS}, 6\ns_add_u32 s{T0}, s{T0}, s{T1}\ns_and_b32 s{T1}, s{sW}, 1\ns_mul_i32 s{T1}, s{T1}, 3\ns_add_u32 s{T0}, s{T0}, s{T1}\ns_lshl_b32 s{T0}, s{T0}, 12")
    E = FRB
    for fi in range(3):
        for ti in range(2):
            c = ACC + 16 * (2 * fi + ti); X = 28 + 2 * ti
            o = E + 32 + 4 * ((2 * fi + ti) & 1)
            for p in range(4):
                g, u = c + 2 * p, c + 8 + 2 * p
                e = E + 4 * p
                A(f"v_pk_fma_f32 {vr(g,2)}, {vr(CS+16*fi+2*p,2)}, {vr(X,2)}, {vr(g,2)} op_sel_hi:[1,0,1]")
                A(f"v_pk_fma_f32 {vr(u,2)}, {vr(CS+16*fi+8+2*p,2)}, {vr(X,2)}, {vr(u,2)} op_sel_hi:[1,0,1]")
                A(f"v_pk_mul_f32 {vr(e,2)}, {vr(g,2)}, {vr(X,2)} op_sel:[0,1] op_sel_hi:[1,1]")
                A(f"v_exp_f32 v{e}, v{e}\nv_exp_f32 v{e+1}, v{e+1}")
                if side: A(side.pop(0))
                A(f"v_pk_mul_f32 {vr(g,2)}, {vr(g,2)}, {vr(u,2)}")
                A(f"v_pk_fma_f32 {vr(e,2)}, {vr(e,2)}, v[16:17], v[16:17] op_sel:[0,{ti},{ti}] op_sel_hi:[1,{ti},{ti}]")
                A(f"v_rcp_f32 v{e}, v{e}\nv_rcp_f32 v{e+1}, v{e+1}")
                if side: A(side.pop(0))
            for p in range(4):
                g = c + 2 * p; e = E + 4 * p
                A(f"v_pk_mul_f32 {vr(g,2)}, {vr(g,2)}, {vr(e,2)}")
                A(f"v_cvt_pk_bf16_f32 v{o+p}, v{g}, v{g+1}")
            A(f"buffer_store_dwordx4 {vr(o,4)}, v{vHMs}, s[{sHM}:{sHM+3}], s{T0} offen offset:{512*ti} sc0 sc1"); VM.add("hm")
        if fi < 2: A(f"s_add_u32 s{T0}, s{T0}, 4096")
    assert not side
    st(4)
    A(f"s_lshl_b32 s{T0}, s{sRB}, 4\ns_add_u32 s{T1}, s{T0}, s{sNS}\ns_lshl_b32 s{T1}, s{T1}, 7\ns_add_u32 s{T1}, s{T1}, {WS_FL2}\nv_mov_b32 v18, s{T1}\nv_mov_b32 v19, 1")
    A(f"s_lshl_b32 s{T1}, s{sW}, 2\ns_add_u32 s{T0}, s{T0}, s{T1}\ns_lshl_b32 s{T0}, s{T0}, 7\ns_add_u32 s{T0}, s{T0}, {WS_FL2}\nv_and_b32 v15, 3, v1\nv_lshl_add_u32 v15, v15, 7, s{T0}")
    VM.wait_all()
    A("s_waitcnt lgkmcnt(0)\ns_barrier")
    A(f"s_cmp_lg_u32 s{sW}, 0\ns_cbranch_scc1 LB_nf\ns_mov_b64 exec, 1\nglobal_store_dword v18, v19, s[{P_WS}:{P_WS+1}] sc0 sc1\ns_mov_b64 exec, -1\nLB_nf:")
    st(5)
    for x in w2dma(9) + w2dma(10) + w2dma(11): emit(x)
    for x in w2reads(6) + w2reads(7) + w2reads(8): A(x)
    VM.wait_all()
    for x in w2reads(9) + w2reads(10) + w2reads(11): A(x)
    st(6)
    A(f"s_mov_b32 s{T0}, 0x100000")
    A(f"LB_p2:\nglobal_load_dword v16, v15, s[{P_WS}:{P_WS+1}] sc0 sc1\ns_waitcnt vmcnt(0)\nv_cmp_eq_u32 vcc, 0, v16\ns_cbranch_vccz LB_g2")
    A(f"s_sub_u32 s{T0}, s{T0}, 1\ns_cmp_lg_u32 s{T0}, 0\ns_cbranch_scc1 LB_p2\nLB_g2:")
    st(7)
    AC2, HF, DEPTH = 32, 112, 8
    A(f"s_mul_i32 s{T0}, s{sRB}, 96\ns_mul_i32 s{T1}, s{sW}, 24\ns_add_u32 s{T0}, s{T0}, s{T1}\ns_lshl_b32 s{T0}, s{T0}, 12")
    def hload(ks):
        L = []
        for tt in range(4):
            L.append((f"buffer_load_dwordx4 {vr(HF+16*(ks%DEPTH)+4*tt,4)}, v{vHMl}, s[{sHM}:{sHM+3}], s{T0} offen offset:{256*tt} sc0 sc1", f"h{ks}_{tt}"))
        L.append(f"s_add_u32 s{T0}, s{T0}, 8192")
        return L
    for ks in range(DEPTH):
        for x in hload(ks): emit(x)
    A("s_waitcnt lgkmcnt(0)")
    for ks in range(12):
        for tt in range(4):
            VM.wait(f"h{ks}_{tt}")
            for dt in range(5):
                c = AC2 + 4 * (5 * tt + dt)
                C = "0" if ks == 0 else vr(c, 4)
                A(f"v_mfma_f32_16x16x32_bf16 {vr(c,4)}, {ar(20*ks+4*dt,4)}, {vr(HF+16*(ks%DEPTH)+4*tt,4)}, {C}")
        if ks + DEPTH < 12:
            for x in hload(ks + DEPTH): emit(x)
    st(8)
    A(f"v_lshl_add_u32 v15, v1, 4, s{sMQ}")
    for w in range(4):
        A(f"s_cmp_lg_u32 s{sW}, {w}\ns_cbranch_scc1 LB_w{w}")
        A("s_nop 7")
        for rel in range(1, 4):
            tt = (w + rel) & 3
            for dt in range(5):
                A(f"ds_write_b128 v15, {vr(AC2+4*(5*tt+dt),4)} offset:{(rel-1)*SLOT+1024*dt}")
        if w:
            for i in range(20): A(f"v_mov_b32 v{AC2+i}, v{AC2+20*w+i}")
        A(f"LB_w{w}:")
    for rel in range(1, 4):
        A(f"s_sub_u32 s{T0}, s{sW}, {rel}\ns_and_b32 s{T0}, s{T0}, 3\ns_mul_i32 s{T0}, s{T0}, {QUART}\nv_lshl_add_u32 v{15+rel}, v1, 4, s{T0}")
    A(f"v_lshrrev_b32 v19, 4, v1\nv_bfe_u32 v20, v1, 2, 2\nv_lshl_add_u32 v20, v19, 2, v20\nv_lshlrev_b32 v20, 7, v20\nv_and_b32 v21, 3, v1\nv_lshl_add_u32 v20, v21, 3, v20")
    A(f"s_lshl_b32 s{T0}, s{sW}, 5\ns_add_u32 s{T0}, s{T0}, {L_RES}\nv_add_u32 v20, s{T0}, v20")
    A(f"s_lshl_b32 s{T0}, s{sRB}, 7\ns_lshl_b32 s{T1}, s{sHALF}, 6\ns_add_u32 s{T0}, s{T0}, s{T1}\ns_lshl_b32 s{T1}, s{sW}, 4\ns_add_u32 s{T0}, s{T0}, s{T1}\ns_mul_i32 s{T0}, s{T0}, 1280\ns_mul_i32 s{T1}, s{sCT}, 160\ns_add_u32 s{T0}, s{T0}, s{T1}")
    A(f"v_and_b32 v21, 15, v1\nv_mul_u32_u24 v21, 1280, v21\nv_lshl_add_u32 v21, v19, 3, v21\nv_add_u32 v21, s{T0}, v21")
    RS = 200
    for dt in range(5): A(f"ds_read_b64_tr_b16 {vr(RS+2*dt,2)}, v20 offset:{2048*dt}")
    A("s_waitcnt lgkmcnt(0)\ns_barrier")
    PR = 112
    for dt in range(5):
        for rel in range(1, 4):
            A(f"ds_read_b128 {vr(PR+4*(3*dt+rel-1),4)}, v{15+rel} offset:{(rel-1)*SLOT+1024*dt}")
    for dt in range(5):
        c = AC2 + 4 * dt; t = 212
        A(f"v_lshlrev_b32 v{t}, 16, v{RS+2*dt}\nv_and_b32 v{t+1}, s{sMASK}, v{RS+2*dt}\nv_lshlrev_b32 v{t+2}, 16, v{RS+2*dt+1}\nv_and_b32 v{t+3}, s{sMASK}, v{RS+2*dt+1}")
        A(f"v_pk_add_f32 {vr(c,2)}, {vr(c,2)}, {vr(t,2)}\nv_pk_add_f32 {vr(c+2,2)}, {vr(c+2,2)}, {vr(t+2,2)}")
    for dt in range(5):
        c = AC2 + 4 * dt
        A(f"s_waitcnt lgkmcnt({12-3*dt})")
        for rel in range(1, 4):
            p = PR + 4 * (3 * dt + rel - 1)
            A(f"v_pk_add_f32 {vr(c,2)}, {vr(c,2)}, {vr(p,2)}\nv_pk_add_f32 {vr(c+2,2)}, {vr(c+2,2)}, {vr(p+2,2)}")
        A(f"v_cvt_pk_bf16_f32 v{220+2*dt}, v{c}, v{c+1}\nv_cvt_pk_bf16_f32 v{221+2*dt}, v{c+2}, v{c+3}")
        A(f"global_store_dwordx2 v21, {vr(220+2*dt,2)}, s[{P_OUT}:{P_OUT+1}] offset:{32*dt}")
    st(9)
    A("LB_exit:\ns_endpgm")
    return A
```

```python
import sys
from asmlib import *
import kA
NAME = "sequential_preLN__ssm_conv_s4__glu_gated_swiglu__prompt"
def header():
    ref = open(f"cdna_kernels/{NAME}.s.ref").read().split("\n")
    return [l for l in ref if l.startswith(";") and "@launch" not in l and not l.startswith("; Override") and not l.startswith("; grid=ceil")]
def build(kernels, path):
    out = header()
    for (n, a, g, b, l, v, ac) in kernels:
        out.append(f"; @launch kernel={n} grid=({g},1,1) block=({b},1,1) lds={l}")
    out.append('.amdgcn_target "amdgcn-amd-amdhsa--gfx950"\n.text')
    for (n, a, g, b, l, v, ac) in kernels:
        out.append(f".globl {n}\n.p2align 8\n.type {n},@function")
        out.append(a.text())
    out.append("L_code_end:\n    s_endpgm")
    for (n, a, g, b, l, v, ac) in kernels:
        out.append(KD.format(name=n, vgpr=v, acc=ac))
    open(path, "w").write("\n".join(out))
if __name__ == "__main__":
    ks = [("kA_kernel", kA.gen_A(), 256, 256, kA.LDS_A, 192, 192)]
    try:
        import kB
        ks.append(("kB_kernel", kB.gen_B(), 256, 256, kB.LDS_B, 512, 256))
    except ImportError:
        pass
    path = sys.argv[1] if len(sys.argv) > 1 else f"cdna_kernels/{NAME}.s"
    build(ks, path)
    print("wrote", path)
```
